```python
import torch

def _softmax(x, axis=-1):
    return torch.softmax(x, dim=axis)
def _gelu(x):
    return torch.nn.functional.gelu(x, approximate="tanh")
def _silu(x):
    return torch.nn.functional.silu(x)
def _sigmoid(x):
    return torch.sigmoid(x)
def _layernorm(x, axis=-1, eps=1e-5):
    m = x.mean(dim=axis, keepdim=True)
    v = x.var(dim=axis, keepdim=True, unbiased=False)
    return (x - m) / torch.sqrt(v + eps)
def _scatter_add(tgt, idx, src, axis=0):
    return tgt.clone().index_add_(axis, idx, src)
def _segment_sum(src, seg, n):
    out = torch.zeros((n,) + src.shape[1:], dtype=src.dtype)
    return out.index_add_(0, seg, src)
def _pad(x, pw):
    flat = tuple(v for pair in reversed(pw) for v in pair)
    return torch.nn.functional.pad(x, flat)

kernel_name = 'gated_mix__linear_attn_block__mixer_s_mlp__prompt'

def setup_inputs():

    _w = (lambda a: (lambda t: t.to(torch.bfloat16) if t.is_floating_point() else t)(torch.as_tensor(a)))
    def _A_setup():
        B, S, D = 1, 2048, 512
        return {
            "x": _w((lambda *s: torch.randn(*s, dtype=torch.bfloat16) * 0.05)(B, S, D)),
            "wqkv": _w((lambda *s: torch.randn(*s, dtype=torch.bfloat16) * 3.2)(D, 3 * D)),
            "wo": _w((lambda *s: torch.randn(*s, dtype=torch.bfloat16) * 1.6)(D, D)),
        }
    _A_in = _A_setup()

    def _B_setup():
        B, S, D, F = 1, 2048, 512, 1792
        return {
            "x":  _w((lambda *s: torch.randn(*s, dtype=torch.bfloat16) * 0.05)(B, S, D)),
            "w1": _w((lambda *s: torch.randn(*s, dtype=torch.bfloat16) * 3.2)(D, D) * (D ** -0.5)),
            "w2": _w((lambda *s: torch.randn(*s, dtype=torch.bfloat16) * 3.2)(D, D) * (D ** -0.5)),
            "w3": _w((lambda *s: torch.randn(*s, dtype=torch.bfloat16) * 3.2)(D, F) * (D ** -0.5)),
            "w4": _w((lambda *s: torch.randn(*s, dtype=torch.bfloat16) * 1.6)(F, D) * (F ** -0.5)),
        }
    _B_in = _B_setup()

    return {
        "A_x": _A_in["x"],
        "A_wqkv": _A_in["wqkv"],
        "A_wo": _A_in["wo"],
        "B_x": _B_in["x"],
        "B_w1": _B_in["w1"],
        "B_w2": _B_in["w2"],
        "B_w3": _B_in["w3"],
        "B_w4": _B_in["w4"],
        "gate_w": _w((lambda *s: torch.randn(*s, dtype=torch.bfloat16) * 0.05)(512) * 16.0),
    }

def reference(A_x, A_wqkv, A_wo, B_x, B_w1, B_w2, B_w3, B_w4, gate_w):
    def _A_ref(x, wqkv, wo):
        B, S, D = x.shape
        H = 32; Dh = D // H
        qkv = (lambda x, *d: x.permute(*d))((x @ wqkv).reshape(B, S, 3, H, Dh), 2, 0, 3, 1, 4)
        q, k, v = qkv[0], qkv[1], qkv[2]
        phi = lambda t: torch.where(t > 0, t + 1, torch.exp(t)) + 1e-6
        pq, pk = phi(q), phi(k)
        kv = torch.einsum("bhsd,bhse->bhde", pk, v)
        z = torch.einsum("bhsd->bhd", pk)
        num = torch.einsum("bhqd,bhde->bhqe", pq, kv)
        den = torch.einsum("bhqd,bhd->bhq", pq, z)[..., None] + 1e-6
        o = num / den
        return (lambda x, *d: x.permute(*d))(o, 0, 2, 1, 3).reshape(B, S, D) @ wo

    def _B_ref(x, w1, w2, w3, w4):
        B, S, D = x.shape
        h = _gelu(_layernorm(x, axis=-1) @ w1)
        c = D // 4
        g0 = _pad(h[:, :, 0*c:1*c], ((0, 0), (1, 0), (0, 0)))[:, :S, :]
        g1 = _pad(h[:, :, 1*c:2*c], ((0, 0), (0, 1), (0, 0)))[:, 1:, :]
        g2 = _pad(h[:, :, 2*c:3*c], ((0, 0), (2, 0), (0, 0)))[:, :S, :]
        g3 = _pad(h[:, :, 3*c:   ], ((0, 0), (0, 2), (0, 0)))[:, 2:, :]
        hs = torch.concatenate([g0, g1, g2, g3], axis=-1) @ w2
        x1 = x + hs
        h2 = _gelu(_layernorm(x1, axis=-1) @ w3) @ w4
        return x1 + h2

    x = A_x
    g = _sigmoid((x * gate_w).sum(-1, keepdims=True))
    a = _A_ref(x, A_wqkv, A_wo)
    b = _B_ref(x, B_w1, B_w2, B_w3, B_w4)
    return g * a + (1 - g) * b
```

```python
import sys
sys.path.insert(0, 'tools')
from asm2 import *

WS_PQ = 0x000000
WS_HS = 0x200000
WS_X1 = 0x400000
WS_AA = 0x600000
WS_H2 = 0x800000
WS_KV = 0xF00000
WS_Z  = 0xF08000
WS_G  = 0xF10000
WS_ST = 0xF20000
WS_FL = 0xF80000
WS_SIZE = 0x1000000

S_AX, S_WQKV, S_WO, S_BX, S_W1, S_W2, S_W3, S_W4, S_GW, S_OUT, S_DBG, S_WS = range(8, 32, 2)
SRD_X, SRD_W, SRD_WS, SRD_M = 32, 36, 40, 44
S_WAVE = 48
S_I = 49
S_J = 50
S_T0 = 52
S_SOX = 64

def load_ptrs(p):
    p('s_load_dwordx16 s[8:23], s[0:1], 0')
    p('s_load_dwordx8 s[24:31], s[0:1], 64')

def srd(p, dst, base, nbytes):
    p(f's_mov_b32 s{dst}, s{base}')
    p(f's_and_b32 s{dst+1}, s{base+1}, 0xffff')
    p(f's_mov_b32 s{dst+2}, {nbytes:#x}')
    p(f's_mov_b32 s{dst+3}, 0x20000')

LOG2E = 1.4426950408889634
import struct
def f2u(x):
    return struct.unpack('<I', struct.pack('<f', x))[0]
GELU_C0 = -2.0 * LOG2E * 0.7978845608028654
GELU_C1 = GELU_C0 * 0.044715

def vr(a, n=1):
    return f'v{a}' if n == 1 else f'v[{a}:{a+n-1}]'
def ar(a, n=1):
    return f'a{a}' if n == 1 else f'a[{a}:{a+n-1}]'
```

```python
from common import *

def gemm_core(p, KS, NT, wread, xop, xneed, acc, wf0, NB=6, D=5, hooks=None, swap=False):
    hooks = hooks or {}
    units = [(ks, t) for ks in range(KS) for t in range(NT)]
    def wbuf(n): return wf0 + (n % NB) * 4
    def issue_w(n):
        ks, t = units[n]
        for h in range(2):
            vreg, imm = wread(ks, t, h)
            p.ds(f'ds_read_b64_tr_b16 v[{wbuf(n)+2*h}:{wbuf(n)+2*h+1}], v{vreg} offset:{imm}', ('w', n))
    if -1 in hooks: hooks[-1]()
    for n in range(min(D, len(units))): issue_w(n)
    for n, (ks, t) in enumerate(units):
        if n in hooks: hooks[n]()
        if n + D < len(units): issue_w(n + D)
        if t == 0: xneed(ks)
        p.need_lgkm(('w', n))
        w4 = f'v[{wbuf(n)}:{wbuf(n)+3}]'
        for rt in range(2):
            a4 = f'v[{acc(rt,t)}:{acc(rt,t)+3}]'
            x4 = xop(ks, rt)
            if swap: p(f'v_mfma_f32_16x16x32_bf16 {a4}, {x4}, {w4}, {a4}')
            else:    p(f'v_mfma_f32_16x16x32_bf16 {a4}, {w4}, {x4}, {a4}')

def w64_dma_setup(p, vdst, T, lane, stride):
    p(f'v_lshrrev_b32 v{T}, 3, v{lane}')
    p(f'v_and_b32 v{T+1}, 7, v{lane}')
    p(f'v_and_b32 v{T+2}, 6, v{T}')
    p(f'v_xor_b32 v{T+1}, v{T+1}, v{T+2}')
    p(f'v_lshlrev_b32 v{T+1}, 4, v{T+1}')
    p(f'v_mul_u32_u24 v{T}, {stride}, v{T}')
    p(f'v_add_u32 v{vdst}, v{T}, v{T+1}')
    for n in range(1, 4):
        p(f'v_add_u32 v{vdst+n}, {n*(8*stride-1024)}, v{vdst}')

def w64_dma(p, vdst, srd_w, s_soff, lds_base_s, lds_imm, row0, nrows, stride, stmp, tag):
    for b in range(nrows // 32):
        p(f's_add_u32 m0, s{lds_base_s}, {lds_imm + b*4096}')
        p(f's_add_u32 s{stmp}, s{s_soff}, {(row0 + b*32)*stride}')
        for n in range(4):
            p.vmem(f'buffer_load_dwordx4 v{vdst+n}, s[{srd_w}:{srd_w+3}], s{stmp} offen offset:{n*1024} lds', tag)

def w64_read_setup(p, vbase, T, lane, g, extra_s=None):
    p(f'v_lshrrev_b32 v{T}, 2, v{lane}'); p(f'v_and_b32 v{T}, 3, v{T}')
    p(f'v_and_b32 v{T+1}, 1, v{g}'); p(f'v_lshlrev_b32 v{T+1}, 1, v{T+1}')
    p(f'v_lshrrev_b32 v{T+2}, 1, v{T}'); p(f'v_or_b32 v{T+1}, v{T+1}, v{T+2}')
    p(f'v_lshl_add_u32 v{T+2}, v{g}, 2, v{T}'); p(f'v_lshlrev_b32 v{T+2}, 7, v{T+2}')
    p(f'v_and_b32 v{T+3}, 3, v{lane}'); p(f'v_lshl_add_u32 v{T+2}, v{T+3}, 3, v{T+2}')
    if extra_s is not None: p(f'v_add_u32 v{T+2}, s{extra_s}, v{T+2}')
    for t in range(4):
        p(f'v_xor_b32 v{T+3}, {t}, v{T+1}')
        p(f'v_lshl_add_u32 v{vbase+t}, v{T+3}, 5, v{T+2}')

def reduce_g(p, r, tmp):
    p(f'v_mov_b32 v{tmp}, v{r}')
    p(f'v_permlane16_swap_b32 v{r}, v{tmp}')
    p(f'v_add_f32 v{r}, v{r}, v{tmp}')
    p(f'v_mov_b32 v{tmp}, v{r}')
    p(f'v_permlane32_swap_b32 v{r}, v{tmp}')
    p(f'v_add_f32 v{r}, v{r}, v{tmp}')

def wave_ids(p, V_LANE=1, V_M=2, V_G=3):
    p(f'v_and_b32 v{V_LANE}, 63, v0'); p(f'v_lshrrev_b32 v4, 6, v0')
    p(f'v_readfirstlane_b32 s{S_WAVE}, v4')
    p(f'v_and_b32 v{V_M}, 15, v{V_LANE}'); p(f'v_lshrrev_b32 v{V_G}, 4, v{V_LANE}')
```

```python
from common import *

V_LANE, V_M, V_G = 1, 2, 3
V_T = 4
V_WB = 16
V_XB = 24
V_XD = 26
V_WD = 30
V_ONES = 36
V_WF = 40
NB = 6
V_XF = 64
V_ACC = 80
V_E0 = 144
V_E = 168
NSTG = 5
STG = 32768

def acc(rt, t): return V_ACC + (rt * 8 + t) * 4

def p1_addr_setup(p, variant):
    stride = 1024 if variant == 'h' else 3072
    T = V_T
    p(f'v_lshrrev_b32 v{T}, 3, v{V_LANE}')
    p(f'v_and_b32 v{T+1}, 7, v{V_LANE}')
    p(f'v_lshrrev_b32 v{T+2}, 1, v{T}')
    p(f'v_xor_b32 v{T+1}, v{T+1}, v{T+2}')
    p(f'v_lshlrev_b32 v{T+1}, 4, v{T+1}')
    p(f'v_lshl_add_u32 v{V_XD}, v{T}, 10, v{T+1}')
    p(f'v_xor_b32 v{T+3}, 64, v{V_XD}')
    p(f'v_add_u32 v{V_XD+1}, 7168, v{T+3}')
    p(f'v_add_u32 v{V_XD+2}, {2*7168}, v{V_XD}')
    p(f'v_add_u32 v{V_XD+3}, {3*7168}, v{T+3}')
    for n in range(4):
        p(f'v_lshlrev_b32 v{T}, 1, v{V_G}')
        if n >> 1: p(f'v_or_b32 v{T}, 8, v{T}')
        p(f'v_xor_b32 v{T}, v{V_M}, v{T}')
        p(f'v_lshlrev_b32 v{T+1}, 4, v{T}')
        if variant == 'kv':
            p(f'v_lshrrev_b32 v{T+2}, 3, v{T}')
            p(f'v_mul_u32_u24 v{T+2}, 896, v{T+2}')
            p(f'v_add_u32 v{T+1}, v{T+1}, v{T+2}')
        p(f'v_mul_u32_u24 v{T+2}, {stride}, v{V_G}')
        p(f'v_add_u32 v{T+1}, v{T+1}, v{T+2}')
        p(f'v_add_u32 v{V_WD+n}, {4*n*stride - n*1024}, v{T+1}')
    p(f'v_lshrrev_b32 v{T}, 2, v{V_LANE}')
    p(f'v_and_b32 v{T}, 3, v{T}')
    p(f'v_and_b32 v{T+1}, 1, v{V_G}')
    p(f'v_lshl_or_b32 v{T+1}, v{T+1}, 2, v{T}')
    p(f'v_lshl_add_u32 v{T+2}, v{V_G}, 3, v{T}')
    p(f'v_lshlrev_b32 v{T+2}, 8, v{T+2}')
    p(f'v_and_b32 v{T+3}, 3, v{V_LANE}')
    p(f'v_lshl_add_u32 v{T+2}, v{T+3}, 3, v{T+2}')
    for i in range(8):
        if variant == 'h':
            p(f's_lshl_b32 s{S_T0}, s{S_WAVE}, 1')
            p(f's_add_u32 s{S_T0}, s{S_T0}, {i}')
            p(f's_and_b32 s{S_T0}, s{S_T0}, 7')
            p(f'v_xor_b32 v{T+3}, s{S_T0}, v{T+1}')
        else:
            p(f'v_xor_b32 v{T+3}, {i}, v{T+1}')
        p(f'v_lshl_add_u32 v{V_WB+i}, v{T+3}, 5, v{T+2}')
    p(f'v_lshrrev_b32 v{T}, 1, v{V_M}')
    p(f'v_xor_b32 v{T}, v{V_G}, v{T}')
    p(f'v_lshlrev_b32 v{T}, 4, v{T}')
    p(f'v_lshl_add_u32 v{T}, v{V_M}, 7, v{T}')
    p(f's_lshl_b32 s{S_T0}, s{S_WAVE}, 12')
    p(f'v_add_u32 v{V_XB}, s{S_T0}, v{T}')
    p(f'v_xor_b32 v{V_XB+1}, 64, v{V_XB}')

def p1_dma_chunk(p, c, part):
    stage = (c % NSTG) * STG
    if part == 0:
        p(f's_add_u32 m0, s66, {stage}')
        p(f's_add_u32 s{S_T0+1}, s64, {c*128}')
        for n in range(4):
            p.vmem(f'buffer_load_dwordx4 v{V_XD+n}, s[{SRD_X}:{SRD_X+3}], s{S_T0+1} offen offset:{n*1024} lds', ('d', c))
    else:
        p(f's_add_u32 m0, s66, {stage+16384}')
        p(f's_add_u32 s{S_T0+2}, s65, s67') if False else None
        p(f's_add_u32 s{S_T0+2}, s65, {c}*s_wchunk') if False else None
        p(f's_add_u32 s{S_T0+2}, s65, {c*64*p.wstride}')
        for n in range(4):
            p.vmem(f'buffer_load_dwordx4 v{V_WD+n}, s[{SRD_W}:{SRD_W+3}], s{S_T0+2} offen offset:{n*1024} lds', ('d', c))

class Win:
    def __init__(self, regs): self.regs = regs; self.cur = 0
    def off(self, p, addr):
        w = (addr // 65536) * 65536
        if w != self.cur:
            d = w - self.cur
            for r in self.regs:
                if d > 0: p(f'v_add_u32 v{r}, {d}, v{r}')
                else: p(f'v_subrev_u32 v{r}, {-d}, v{r}')
            self.cur = w
        return addr - w

def p1_main(p, variant):
    swap = (variant == 'kv')
    NCH = 8
    D = 5
    wwin = Win(list(range(V_WB, V_WB + 8)))
    xwin = Win([V_XB, V_XB + 1])
    units = [(ks, t) for ks in range(2 * NCH) for t in range(8)]
    def wbuf(n): return V_WF + (n % NB) * 4
    def issue_w(n):
        ks, t = units[n]
        c, k2 = ks // 2, ks % 2
        base = (c % NSTG) * STG + 16384 + k2 * 8192
        for h in range(2):
            o = wwin.off(p, base + h * 1024)
            p.ds(f'ds_read_b64_tr_b16 v[{wbuf(n)+2*h}:{wbuf(n)+2*h+1}], v{V_WB+t} offset:{o}', ('w', n))
    def xbuf(ks, rt): return V_XF + ((ks & 1) * 2 + rt) * 4
    def issue_x(ks):
        c, k2 = ks // 2, ks % 2
        for rt in range(2):
            o = xwin.off(p, (c % NSTG) * STG + rt * 2048)
            p.ds(f'ds_read_b128 v[{xbuf(ks,rt)}:{xbuf(ks,rt)+3}], v{V_XB+k2} offset:{o}', ('x', ks))
    p.need_vm(('d', 0))
    p('s_barrier')
    issue_x(0)
    for n in range(D): issue_w(n)
    pending_dma = []
    for n, (ks, t) in enumerate(units):
        c = ks // 2
        u = n - 16 * c
        if u == 8 and c + 1 < NCH:
            p.need_vm(('d', c + 1))
            p('s_barrier')
            if c + 4 < NCH:
                pending_dma = [(c + 4, 0), (c + 4, 1)]
        if u in (9, 11) and pending_dma:
            cc, part = pending_dma.pop(0)
            p1_dma_chunk(p, cc, part)
        if u == 2: issue_x(ks + 1)
        if u == 10 and ks + 1 < 2 * NCH: issue_x(ks + 1)
        if n + D < len(units): issue_w(n + D)
        if t == 0: p.need_lgkm(('x', ks))
        p.need_lgkm(('w', n))
        w4 = f'v[{wbuf(n)}:{wbuf(n)+3}]'
        for rt in range(2):
            x4 = f'v[{xbuf(ks,rt)}:{xbuf(ks,rt)+3}]'
            a4 = f'v[{acc(rt,t)}:{acc(rt,t)+3}]'
            if swap: p(f'v_mfma_f32_16x16x32_bf16 {a4}, {x4}, {w4}, {a4}')
            else:    p(f'v_mfma_f32_16x16x32_bf16 {a4}, {w4}, {x4}, {a4}')
        ones = f'v[{V_ONES}:{V_ONES+3}]'
        if variant == 'h':
            if t in (0, 1):
                e = V_E0 + 16 + 4 * t
                p(f'v_mfma_f32_16x16x32_bf16 v[{e}:{e+3}], {w4}, {ones}, v[{e}:{e+3}]')
            if t in (2, 3):
                rt = t - 2; e = V_E0 + 4 * rt
                p(f'v_mfma_f32_16x16x32_bf16 v[{e}:{e+3}], {ones}, v[{xbuf(ks,rt)}:{xbuf(ks,rt)+3}], v[{e}:{e+3}]')
            if t in (4, 5):
                rt = t - 4; e = V_E0 + 8 + 4 * rt
                x4 = f'v[{xbuf(ks,rt)}:{xbuf(ks,rt)+3}]'
                p(f'v_mfma_f32_16x16x32_bf16 v[{e}:{e+3}], {x4}, {x4}, v[{e}:{e+3}]')
        if variant == 'kv' and t in (2, 3):
            rt = t - 2; e = V_E0 + 4 * rt
            p(f'v_mfma_f32_16x16x32_bf16 v[{e}:{e+3}], v[{xbuf(ks,rt)}:{xbuf(ks,rt)+3}], a[{4*ks}:{4*ks+3}], v[{e}:{e+3}]')

def phi8(p, regs, tmp, cL, cE):
    for i, r in enumerate(regs):
        p(f'v_pk_mul_f32 v[{tmp+2*i}:{tmp+2*i+1}], v[{r}:{r+1}], v[{cL}:{cL+1}]')
    for i in range(2 * len(regs)):
        p(f'v_exp_f32 v{tmp+i}, v{tmp+i} clamp')
    for r in regs:
        p(f'v_max_f32 v{r}, 0, v{r}'); p(f'v_max_f32 v{r+1}, 0, v{r+1}')
    for i, r in enumerate(regs):
        p(f'v_pk_add_f32 v[{r}:{r+1}], v[{r}:{r+1}], v[{tmp+2*i}:{tmp+2*i+1}]')
    for i, r in enumerate(regs):
        p(f'v_pk_add_f32 v[{r}:{r+1}], v[{r}:{r+1}], v[{cE}:{cE+1}]')

def gelu_pairs(p, regs, tmp, cC1, cC0, cOne):
    n = len(regs)
    for i, r in enumerate(regs): p(f'v_pk_mul_f32 v[{tmp+2*i}:{tmp+2*i+1}], v[{r}:{r+1}], v[{r}:{r+1}]')
    for i, r in enumerate(regs): p(f'v_pk_fma_f32 v[{tmp+2*i}:{tmp+2*i+1}], v[{tmp+2*i}:{tmp+2*i+1}], v[{cC1}:{cC1+1}], v[{cC0}:{cC0+1}]')
    for i, r in enumerate(regs): p(f'v_pk_mul_f32 v[{tmp+2*i}:{tmp+2*i+1}], v[{tmp+2*i}:{tmp+2*i+1}], v[{r}:{r+1}]')
    for i in range(2 * n): p(f'v_exp_f32 v{tmp+i}, v{tmp+i}')
    for i, r in enumerate(regs): p(f'v_pk_add_f32 v[{tmp+2*i}:{tmp+2*i+1}], v[{tmp+2*i}:{tmp+2*i+1}], v[{cOne}:{cOne+1}]')
    for i in range(2 * n): p(f'v_rcp_f32 v{tmp+i}, v{tmp+i}')
    for i, r in enumerate(regs): p(f'v_pk_mul_f32 v[{r}:{r+1}], v[{r}:{r+1}], v[{tmp+2*i}:{tmp+2*i+1}]')

def const_pair(p, r, val):
    p(f'v_mov_b32 v{r}, {f2u(val):#x}'); p(f'v_mov_b32 v{r+1}, {f2u(val):#x}')

def p1_variant(p, variant, sc, zero_role=None):
    T = V_T
    stride = 1024 if variant == 'h' else 3072
    p.wstride = stride
    if variant == 'h':
        srd(p, SRD_X, S_AX, 2048*1024); srd(p, SRD_W, S_W1, 512*1024)
    else:
        srd(p, SRD_X, S_AX, 2048*1024); srd(p, SRD_W, S_WQKV, 512*3072)
    p(f's_lshl_b32 s64, s{S_I}, 17'); p(f's_lshl_b32 s{S_T0}, s{S_WAVE}, 15'); p(f's_add_u32 s64, s64, s{S_T0}')
    p(f's_lshl_b32 s66, s{S_WAVE}, 12')
    p(f's_mul_i32 s65, s{S_WAVE}, {16*stride}')
    if variant == 'q':
        p(f's_lshl_b32 s{S_T0}, s{S_J}, 8')
    elif variant == 'kv':
        p(f's_sub_u32 s{S_T0}, s{S_J}, 4'); p(f's_lshl_b32 s{S_T0}, s{S_T0}, 7'); p(f's_add_u32 s{S_T0}, s{S_T0}, 1024')
    else:
        p(f's_sub_u32 s{S_T0}, s{S_J}, 12'); p(f's_lshl_b32 s{S_T0}, s{S_T0}, 8')
    p(f's_add_u32 s65, s65, s{S_T0}')
    p1_addr_setup(p, variant)
    if variant == 'kv':
        srd(p, SRD_M, S_GW, 1024)
        p(f'v_lshlrev_b32 v{T}, 4, v{V_G}')
        for ks in range(16):
            p.vmem(f'buffer_load_dwordx4 a[{4*ks}:{4*ks+3}], v{T}, s[{SRD_M}:{SRD_M+3}], 0 offen offset:{64*ks}', ('gw',))
    for c in range(NSTG):
        p1_dma_chunk(p, c, 0); p1_dma_chunk(p, c, 1)
    for r in range(V_ACC, V_ACC + 64): p(f'v_mov_b32 v{r}, 0')
    for r in range(V_E0, V_E0 + 24): p(f'v_mov_b32 v{r}, 0')
    for r in range(4): p(f'v_mov_b32 v{V_ONES+r}, 0x3f803f80')
    p1_main(p, variant)
    E = V_E
    if variant == 'q':
        const_pair(p, E, LOG2E); const_pair(p, E+2, 1e-6)
        p(f's_lshl_b32 s{S_T0}, s{S_I}, 3'); p(f's_lshl_b32 s{S_T0+1}, s{S_WAVE}, 1'); p(f's_add_u32 s{S_T0}, s{S_T0}, s{S_T0+1}')
        p(f's_lshl_b32 s{S_T0}, s{S_T0}, 14'); p(f's_lshl_b32 s{S_T0+1}, s{S_J}, 12'); p(f's_add_u32 s{S_T0}, s{S_T0}, s{S_T0+1}')
        p(f's_add_u32 s{S_T0}, s{S_T0}, {WS_PQ}')
        p(f'v_lshlrev_b32 v{T}, 4, v{V_LANE}')
        k = 0
        for rt in range(2):
            p(f's_add_u32 s{S_T0+2}, s{S_T0}, {rt*16384}')
            for u in range(4):
                A, B = acc(rt, 2*u), acc(rt, 2*u+1)
                phi8(p, [A, A+2, B, B+2], E + 8, E, E + 2)
                o = E + 16 + 4 * (k % 2); k += 1
                p(f'v_cvt_pk_bf16_f32 v{o}, v{A}, v{A+1}'); p(f'v_cvt_pk_bf16_f32 v{o+1}, v{A+2}, v{A+3}')
                p(f'v_cvt_pk_bf16_f32 v{o+2}, v{B}, v{B+1}'); p(f'v_cvt_pk_bf16_f32 v{o+3}, v{B+2}, v{B+3}')
                p.vmem(f'buffer_store_dwordx4 v[{o}:{o+3}], v{T}, s[{SRD_WS}:{SRD_WS+3}], s{S_T0+2} offen offset:{u*1024}{sc}', ('st',))
    elif variant == 'kv':
        const_pair(p, E, LOG2E); const_pair(p, E+2, 1e-6)
        G0 = V_E0
        for r in range(8): p(f'v_mul_f32 v{E+8+r}, {f2u(-LOG2E):#x}, v{G0+r}')
        for r in range(8): p(f'v_exp_f32 v{E+8+r}, v{E+8+r}')
        for r in range(8): p(f'v_add_f32 v{E+8+r}, 1.0, v{E+8+r}')
        for r in range(8): p(f'v_rcp_f32 v{E+8+r}, v{E+8+r}')
        lskip = p.label('L_nog')
        p(f's_cmp_lg_u32 s{S_J}, 4'); p(f's_cbranch_scc1 {lskip}')
        p(f's_lshl_b32 s{S_T0}, s{S_I}, 7'); p(f's_lshl_b32 s{S_T0+1}, s{S_WAVE}, 5'); p(f's_add_u32 s{S_T0}, s{S_T0}, s{S_T0+1}')
        p(f's_lshl_b32 s{S_T0}, s{S_T0}, 2'); p(f's_add_u32 s{S_T0}, s{S_T0}, {WS_G}')
        p(f'v_lshlrev_b32 v{T}, 4, v{V_G}')
        p(f'v_cmp_eq_u32 vcc, 0, v{V_M}')
        p(f's_and_saveexec_b64 s[{S_T0+2}:{S_T0+3}], vcc')
        p(f'buffer_store_dwordx4 v[{E+8}:{E+11}], v{T}, s[{SRD_WS}:{SRD_WS+3}], s{S_T0} offen{sc}')
        p(f'buffer_store_dwordx4 v[{E+12}:{E+15}], v{T}, s[{SRD_WS}:{SRD_WS+3}], s{S_T0} offen offset:64{sc}')
        p(f's_mov_b64 exec, s[{S_T0+2}:{S_T0+3}]')
        p(f'{lskip}:')
        p('s_nop 4')
        KV = E + 24
        ZA = KV + 16
        for r in range(KV, KV + 32): p(f'v_mov_b32 v{r}, 0')
        for hh in range(4):
            A, B = acc(0, hh), acc(1, hh)
            phi8(p, [A, A+2, B, B+2], E + 8, E, E + 2)
            pk = E + 16
            p(f'v_cvt_pk_bf16_f32 v{pk}, v{A}, v{A+1}'); p(f'v_cvt_pk_bf16_f32 v{pk+1}, v{A+2}, v{A+3}')
            p(f'v_cvt_pk_bf16_f32 v{pk+2}, v{B}, v{B+1}'); p(f'v_cvt_pk_bf16_f32 v{pk+3}, v{B+2}, v{B+3}')
            A2, B2 = acc(0, 4+hh), acc(1, 4+hh)
            pv = E + 20
            p(f'v_cvt_pk_bf16_f32 v{pv}, v{A2}, v{A2+1}'); p(f'v_cvt_pk_bf16_f32 v{pv+1}, v{A2+2}, v{A2+3}')
            p(f'v_cvt_pk_bf16_f32 v{pv+2}, v{B2}, v{B2+1}'); p(f'v_cvt_pk_bf16_f32 v{pv+3}, v{B2+2}, v{B2+3}')
            p(f'v_mfma_f32_16x16x32_bf16 v[{KV+4*hh}:{KV+4*hh+3}], v[{pk}:{pk+3}], v[{pv}:{pv+3}], v[{KV+4*hh}:{KV+4*hh+3}]')
            p(f'v_mfma_f32_16x16x32_bf16 v[{ZA+4*hh}:{ZA+4*hh+3}], v[{pk}:{pk+3}], v[{V_ONES}:{V_ONES+3}], v[{ZA+4*hh}:{ZA+4*hh+3}]')
        p('s_barrier')
        p(f's_lshl_b32 s{S_T0}, s{S_WAVE}, 12')
        p(f'v_lshlrev_b32 v{T}, 4, v{V_LANE}'); p(f'v_add_u32 v{T}, s{S_T0}, v{T}')
        for hh in range(4):
            p.ds(f'ds_write_b128 v{T}, v[{KV+4*hh}:{KV+4*hh+3}] offset:{hh*1024}')
        p(f's_lshl_b32 s{S_T0}, s{S_WAVE}, 8')
        p(f'v_lshlrev_b32 v{T+1}, 4, v{V_G}'); p(f'v_add_u32 v{T+1}, s{S_T0}, v{T+1}')
        p(f'v_cmp_eq_u32 vcc, 0, v{V_M}')
        p(f's_and_saveexec_b64 s[{S_T0+2}:{S_T0+3}], vcc')
        for hh in range(4):
            p.ds(f'ds_write_b128 v{T+1}, v[{ZA+4*hh}:{ZA+4*hh+3}] offset:{16384+hh*64}')
        p(f's_mov_b64 exec, s[{S_T0+2}:{S_T0+3}]')
        p.wait_all_lgkm()
        p('s_barrier')
        p(f's_lshl_b32 s{S_T0}, s{S_WAVE}, 10')
        p(f'v_lshlrev_b32 v{T}, 4, v{V_LANE}'); p(f'v_add_u32 v{T}, s{S_T0}, v{T}')
        for ww in range(4):
            p.ds(f'ds_read_b128 v[{E+8+4*ww}:{E+8+4*ww+3}], v{T} offset:{ww*4096}')
        p(f's_lshl_b32 s{S_T0}, s{S_WAVE}, 6')
        p(f'v_and_b32 v{T+1}, 15, v{V_LANE}'); p(f'v_lshlrev_b32 v{T+1}, 2, v{T+1}'); p(f'v_add_u32 v{T+2}, s{S_T0}, v{T+1}')
        for ww in range(4):
            p.ds(f'ds_read_b32 v{E+24+ww}, v{T+2} offset:{16384+ww*256}')
        p.wait_all_lgkm()
        for ww in range(1, 4):
            p(f'v_pk_add_f32 v[{E+8}:{E+9}], v[{E+8}:{E+9}], v[{E+8+4*ww}:{E+9+4*ww}]')
            p(f'v_pk_add_f32 v[{E+10}:{E+11}], v[{E+10}:{E+11}], v[{E+10+4*ww}:{E+11+4*ww}]')
            p(f'v_add_f32 v{E+24}, v{E+24}, v{E+24+ww}')
        srd(p, SRD_M, S_DBG, 256)
        lp = p.label('L_zpoll')
        p(f'v_mov_b32 v{T+4}, 0')
        p(f'{lp}:')
        p(f'buffer_load_dword v{T+5}, v{T+4}, s[{SRD_M}:{SRD_M+3}], 0 offen sc1')
        p('s_waitcnt vmcnt(0)')
        p(f'v_readfirstlane_b32 s{S_T0}, v{T+5}')
        p(f's_cmp_eq_u32 s{S_T0}, 0')
        p(f's_cbranch_scc1 {lp}')
        p.vm = []
        p(f's_sub_u32 s{S_T0}, s{S_J}, 4'); p(f's_lshl_b32 s{S_T0}, s{S_T0}, 2'); p(f's_add_u32 s{S_T0}, s{S_T0}, s{S_WAVE}')
        p(f's_lshl_b32 s{S_T0+1}, s{S_T0}, 10'); p(f's_add_u32 s{S_T0+1}, s{S_T0+1}, {WS_KV}')
        p(f's_lshl_b32 s{S_T0+2}, s{S_T0}, 6'); p(f's_add_u32 s{S_T0+2}, s{S_T0+2}, {WS_Z}')
        p(f'v_lshlrev_b32 v{T}, 2, v{V_LANE}')
        for r in range(4):
            p.vmem(f'buffer_atomic_add_f32 v{E+8+r}, v{T}, s[{SRD_WS}:{SRD_WS+3}], s{S_T0+1} offen offset:{r*256}')
        p('s_mov_b64 exec, 0xffff')
        p.vmem(f'buffer_atomic_add_f32 v{E+24}, v{T+1}, s[{SRD_WS}:{SRD_WS+3}], s{S_T0+2} offen')
        p('s_mov_b64 exec, -1')
    else:
        S0, Q0, C0 = V_E0, V_E0 + 8, V_E0 + 16
        p('s_barrier')
        p(f's_lshl_b32 s{S_T0}, s{S_WAVE}, 7')
        p(f'v_lshlrev_b32 v{T}, 4, v{V_G}'); p(f'v_add_u32 v{T+1}, s{S_T0}, v{T}')
        p(f'v_cmp_eq_u32 vcc, 0, v{V_M}')
        p(f's_and_saveexec_b64 s[{S_T0+2}:{S_T0+3}], vcc')
        p.ds(f'ds_write_b128 v{T+1}, v[{C0}:{C0+3}]')
        p.ds(f'ds_write_b128 v{T+1}, v[{C0+4}:{C0+7}] offset:64')
        p(f's_mov_b64 exec, s[{S_T0+2}:{S_T0+3}]')
        p(f'v_and_b32 v{T+2}, 1, v{V_M}'); p(f'v_and_b32 v{T+3}, 2, v{V_M}')
        p(f'v_cmp_eq_u32 s[{S_T0+4}:{S_T0+5}], 1, v{T+2}'); p(f'v_cmp_eq_u32 s[{S_T0+6}:{S_T0+7}], 2, v{T+3}')
        p(f'v_lshrrev_b32 v{T+2}, 2, v{V_M}'); p(f'v_lshl_add_u32 v{T+2}, v{T+2}, 4, v{V_M}'); p(f'v_lshlrev_b32 v{T+2}, 2, v{T+2}')
        for rt in range(2):
            q = Q0 + 4 * rt
            p(f'v_cndmask_b32 v{E+rt*2}, v{q}, v{q+1}, s[{S_T0+4}:{S_T0+5}]')
            p(f'v_cndmask_b32 v{E+rt*2+1}, v{q+2}, v{q+3}, s[{S_T0+4}:{S_T0+5}]')
            p(f'v_cndmask_b32 v{E+rt*2}, v{E+rt*2}, v{E+rt*2+1}, s[{S_T0+6}:{S_T0+7}]')
            p.ds(f'ds_bpermute_b32 v{E+4+rt}, v{T+2}, v{E+rt*2}')
        p.wait_all_lgkm()
        p('s_barrier')
        CS = E + 24
        for i in range(8):
            p(f's_lshl_b32 s{S_T0}, s{S_WAVE}, 1'); p(f's_add_u32 s{S_T0}, s{S_T0}, {i}'); p(f's_and_b32 s{S_T0}, s{S_T0}, 7'); p(f's_lshl_b32 s{S_T0}, s{S_T0}, 6')
            p(f'v_add_u32 v{T+4}, s{S_T0}, v{T}')
            p.ds(f'ds_read_b128 v[{CS+4*i}:{CS+4*i+3}], v{T+4}')
        MR = E + 8
        for rt in range(2):
            p(f'v_mul_f32 v{MR+2*rt}, {f2u(-1.0/512):#x}, v{S0+4*rt}')
            p(f'v_mul_f32 v{E+6}, {f2u(1.0/512):#x}, v{E+4+rt}')
            p(f'v_fma_f32 v{E+6}, -v{MR+2*rt}, v{MR+2*rt}, v{E+6}')
            p(f'v_max_f32 v{E+6}, 0, v{E+6}')
            p(f'v_add_f32 v{E+6}, {f2u(1e-5):#x}, v{E+6}')
            p(f'v_rsq_f32 v{MR+2*rt+1}, v{E+6}')
        const_pair(p, E+12, GELU_C1); const_pair(p, E+14, GELU_C0); const_pair(p, E+16, 1.0)
        p(f's_sub_u32 s{S_T0}, s{S_J}, 12')
        p(f's_lshr_b32 s{S_T0+1}, s{S_T0}, 1'); p(f's_add_u32 s{S_T0+1}, s{S_T0+1}, 1')
        p(f's_sub_u32 s{S_T0+2}, 0, s{S_T0+1}')
        p(f's_bitcmp1_b32 s{S_T0}, 0'); p(f's_cselect_b32 s{S_T0+1}, s{S_T0+2}, s{S_T0+1}')
        p(f's_lshl_b32 s{S_T0+3}, s{S_I}, 7'); p(f's_lshl_b32 s{S_T0+2}, s{S_WAVE}, 5'); p(f's_add_u32 s{S_T0+3}, s{S_T0+3}, s{S_T0+2}')
        p(f's_add_u32 s{S_T0+3}, s{S_T0+3}, s{S_T0+1}')
        AD, MK = E + 18, E + 20
        for rt in range(2):
            p(f'v_add_u32 v{T+5}, s{S_T0+3}, v{V_M}')
            if rt: p(f'v_add_u32 v{T+5}, 16, v{T+5}')
            p(f'v_cmp_gt_u32 vcc, 2048, v{T+5}')
            p(f'v_cndmask_b32 v{MK+rt}, 0, -1, vcc')
            p(f'v_and_b32 v{T+5}, 2047, v{T+5}')
            p(f'v_lshrrev_b32 v{T+6}, 4, v{T+5}'); p(f'v_lshlrev_b32 v{T+6}, 14, v{T+6}')
            p(f'v_and_b32 v{T+5}, 15, v{T+5}'); p(f'v_lshl_add_u32 v{T+6}, v{T+5}, 4, v{T+6}')
            p(f'v_lshl_add_u32 v{AD+rt}, v{V_G}, 8, v{T+6}')
        for pp in range(4):
            p(f's_add_u32 s{S_T0+4+pp}, s{S_WAVE}, {pp}'); p(f's_and_b32 s{S_T0+4+pp}, s{S_T0+4+pp}, 3')
            p(f's_lshl_b32 s{S_T0+8}, s{S_T0}, 2'); p(f's_add_u32 s{S_T0+4+pp}, s{S_T0+4+pp}, s{S_T0+8}')
            p(f's_lshl_b32 s{S_T0+4+pp}, s{S_T0+4+pp}, 10'); p(f's_add_u32 s{S_T0+4+pp}, s{S_T0+4+pp}, {WS_HS}')
        p.wait_all_lgkm()
        TMP = E + 56
        k = 0
        for rt in range(2):
            mr = MR + 2 * rt
            for pp in range(4):
                A, B = acc(rt, 2*pp), acc(rt, 2*pp+1)
                prs = [(A, CS + 8*pp), (A+2, CS + 8*pp + 2), (B, CS + 8*pp + 4), (B+2, CS + 8*pp + 6)]
                for r, c in prs:
                    p(f'v_pk_fma_f32 v[{r}:{r+1}], v[{c}:{c+1}], v[{mr}:{mr+1}], v[{r}:{r+1}] op_sel_hi:[1,0,1]')
                for r, c in prs:
                    p(f'v_pk_mul_f32 v[{r}:{r+1}], v[{r}:{r+1}], v[{mr}:{mr+1}] op_sel:[0,1] op_sel_hi:[1,1]')
                gelu_pairs(p, [A, A+2, B, B+2], TMP, E+12, E+14, E+16)
                o = E + 64 + 4 * (k % 2); k += 1
                p(f'v_cvt_pk_bf16_f32 v{o}, v{A}, v{A+1}'); p(f'v_cvt_pk_bf16_f32 v{o+1}, v{A+2}, v{A+3}')
                p(f'v_cvt_pk_bf16_f32 v{o+2}, v{B}, v{B+1}'); p(f'v_cvt_pk_bf16_f32 v{o+3}, v{B+2}, v{B+3}')
                for r in range(4): p(f'v_and_b32 v{o+r}, v{MK+rt}, v{o+r}')
                p.vmem(f'buffer_store_dwordx4 v[{o}:{o+3}], v{AD+rt}, s[{SRD_WS}:{SRD_WS+3}], s{S_T0+4+pp} offen{sc}', ('st',))

def p1_kernel(sc=''):
    p = Prog()
    name = 'p1_kernel'
    p('s_cmp_ge_u32 s2, 256'); p('s_cbranch_scc1 L1_end')
    load_ptrs(p)
    p(f'v_and_b32 v{V_LANE}, 63, v0'); p(f'v_lshrrev_b32 v4, 6, v0')
    p(f'v_readfirstlane_b32 s{S_WAVE}, v4')
    p(f'v_and_b32 v{V_M}, 15, v{V_LANE}'); p(f'v_lshrrev_b32 v{V_G}, 4, v{V_LANE}')
    p('s_and_b32 s52, s2, 7'); p('s_lshr_b32 s53, s2, 3')
    p('s_lshr_b32 s54, s52, 2'); p('s_lshl_b32 s54, s54, 3'); p('s_lshr_b32 s55, s53, 2'); p(f's_add_u32 s{S_I}, s54, s55')
    p('s_and_b32 s54, s52, 3'); p('s_lshl_b32 s54, s54, 2'); p('s_and_b32 s55, s53, 3'); p(f's_add_u32 s{S_J}, s54, s55')
    p('s_waitcnt lgkmcnt(0)')
    srd(p, SRD_WS, S_WS, WS_SIZE)
    p('s_cmp_lg_u32 s2, 0'); p('s_cbranch_scc1 L1_nozero')
    p('v_mov_b32 v4, 0'); p('v_mov_b32 v5, 0'); p('v_mov_b32 v6, 0'); p('v_mov_b32 v7, 0')
    p(f'v_lshlrev_b32 v8, 4, v0')
    for n in range(9):
        p(f's_mov_b32 s52, {WS_KV + n*4096:#x}')
        p(f'buffer_store_dwordx4 v[4:7], v8, s[{SRD_WS}:{SRD_WS+3}], s52 offen sc1')
    p('s_waitcnt vmcnt(0)'); p('s_barrier')
    srd(p, SRD_M, S_DBG, 256)
    p('v_mov_b32 v4, 1'); p('v_mov_b32 v5, 0')
    p('v_cmp_eq_u32 vcc, 0, v0'); p('s_and_saveexec_b64 s[52:53], vcc')
    p(f'buffer_store_dword v4, v5, s[{SRD_M}:{SRD_M+3}], 0 offen sc1')
    p('s_mov_b64 exec, s[52:53]')
    p('L1_nozero:')
    p(f's_cmp_lt_u32 s{S_J}, 4'); p('s_cbranch_scc1 L1_q')
    p(f's_cmp_lt_u32 s{S_J}, 12'); p('s_cbranch_scc1 L1_kv')
    for v, l in (('h', None), ('q', 'L1_q'), ('kv', 'L1_kv')):
        if l: p(f'{l}:')
        p.vm = []; p.lgkm = []
        p1_variant(p, v, sc)
        p('s_endpgm')
    p('L1_end:'); p('s_endpgm')
    return name, p
```

```python
from common import *
from core import *

V_LANE, V_M, V_G = 1, 2, 3
T = 4
V_WB = 16
V_WD = 20
V_L16 = 24
V_WF = 28
V_ACC = 52
V_XR = 84
E = 100

def acc(rt, t): return V_ACC + (rt * 4 + t) * 4

def load_act_frags(p, ws_off, nks, srd_ws, s_rt0, flags, ks0_s=None):
    pass

def p2_common(p, wptr, sc_ld):
    srd(p, SRD_W, wptr, 512 * 1024)
    w64_dma_setup(p, V_WD, T, V_LANE, 1024)
    p(f's_and_b32 s{S_T0}, s{S_J}, 7'); p(f's_lshl_b32 s{S_T0}, s{S_T0}, 7')
    p(f's_lshl_b32 s{S_T0+1}, s{S_WAVE}, 17'); p(f's_add_u32 s64, s{S_T0}, s{S_T0+1}')
    p(f's_lshl_b32 s66, s{S_WAVE}, 14')
    w64_dma(p, V_WD, SRD_W, 64, 66, 0, 0, 128, 1024, S_T0 + 2, ('w',))
    w64_read_setup(p, V_WB, T, V_LANE, V_G)
    p(f'v_lshlrev_b32 v{V_L16}, 4, v{V_LANE}')
    p(f's_lshl_b32 s67, s{S_I}, 3'); p(f's_lshl_b32 s{S_T0}, s{S_WAVE}, 1'); p(f's_add_u32 s67, s67, s{S_T0}')

def act_loads(p, ws_off, nks_total, ks_list, sc_ld, s_ks0=None):
    p(f's_mul_i32 s68, s67, {nks_total*1024}'); p(f's_add_u32 s68, s68, {ws_off}')
    if s_ks0 is not None: p(f's_add_u32 s68, s68, s{s_ks0}')
    p(f's_add_u32 s69, s68, {nks_total*1024}')
    for n, ks in enumerate(ks_list):
        if ks % 4 == 0 and n > 0:
            p(f's_add_u32 s68, s68, 4096'); p(f's_add_u32 s69, s69, 4096')
        for rt in range(2):
            a0 = (n * 2 + rt) * 4
            p.vmem(f'buffer_load_dwordx4 a[{a0}:{a0+3}], v{V_L16}, s[{SRD_WS}:{SRD_WS+3}], s{68+rt} offen offset:{(ks%4)*1024}{sc_ld}', ('x', n))

def wread64(ks, t, h): return (V_WB + t, ks * 4096 + h * 2048)

def p2_x1(p, sc, sc_ld):
    p2_common(p, S_W2, sc_ld)
    srd(p, SRD_X, S_AX, 2048 * 1024)
    p(f'v_lshlrev_b32 v{T}, 10, v{V_M}'); p(f'v_lshl_add_u32 v{T}, v{V_G}, 3, v{T}')
    p(f's_lshl_b32 s{S_T0}, s67, 14'); p(f's_lshl_b32 s{S_T0+1}, s{S_J}, 7'); p(f's_add_u32 s{S_T0}, s{S_T0}, s{S_T0+1}')
    p(f's_add_u32 s{S_T0+1}, s{S_T0}, 16384')
    for rt in range(2):
        for t in range(4):
            r = V_XR + (rt * 4 + t) * 2
            p.vmem(f'buffer_load_dwordx2 v[{r}:{r+1}], v{T}, s[{SRD_X}:{SRD_X+3}], s{S_T0+rt} offen offset:{32*t}', ('xr',))
    act_loads(p, WS_HS, 16, list(range(16)), sc_ld)
    for r in range(V_ACC, V_ACC + 32): p(f'v_mov_b32 v{r}, 0')
    p.need_vm(('w',)); p('s_barrier')
    gemm_core(p, 16, 4, wread64, lambda ks, rt: f'a[{(ks*2+rt)*4}:{(ks*2+rt)*4+3}]', lambda ks: p.need_vm(('x', ks)), acc, V_WF)
    p(f's_lshl_b32 s{S_T0}, s67, 14'); p(f's_lshl_b32 s{S_T0+1}, s{S_J}, 11'); p(f's_add_u32 s{S_T0}, s{S_T0}, s{S_T0+1}')
    p(f's_add_u32 s{S_T0}, s{S_T0}, {WS_X1}'); p(f's_add_u32 s{S_T0+1}, s{S_T0}, 16384')
    p(f's_lshl_b32 s{S_T0+2}, s67, 10'); p(f's_lshl_b32 s{S_T0+3}, s{S_J}, 3'); p(f's_add_u32 s{S_T0+2}, s{S_T0+2}, s{S_T0+3}')
    p(f's_add_u32 s{S_T0+2}, s{S_T0+2}, {WS_ST}')
    p(f'v_lshlrev_b32 v{T+1}, 6, v{V_M}')
    for rt in range(2):
        S, Q = E + 16, E + 18
        for t in range(4):
            xr = V_XR + (rt * 4 + t) * 2; a = acc(rt, t)
            p(f'v_lshlrev_b32 v{E}, 16, v{xr}'); p(f'v_and_b32 v{E+1}, 0xffff0000, v{xr}')
            p(f'v_lshlrev_b32 v{E+2}, 16, v{xr+1}'); p(f'v_and_b32 v{E+3}, 0xffff0000, v{xr+1}')
            p(f'v_pk_add_f32 v[{a}:{a+1}], v[{a}:{a+1}], v[{E}:{E+1}]')
            p(f'v_pk_add_f32 v[{a+2}:{a+3}], v[{a+2}:{a+3}], v[{E+2}:{E+3}]')
            if t == 0:
                p(f'v_pk_add_f32 v[{S}:{S+1}], v[{a}:{a+1}], v[{a+2}:{a+3}]')
                p(f'v_pk_mul_f32 v[{Q}:{Q+1}], v[{a}:{a+1}], v[{a}:{a+1}]')
                p(f'v_pk_fma_f32 v[{Q}:{Q+1}], v[{a+2}:{a+3}], v[{a+2}:{a+3}], v[{Q}:{Q+1}]')
            else:
                p(f'v_pk_add_f32 v[{S}:{S+1}], v[{S}:{S+1}], v[{a}:{a+1}]')
                p(f'v_pk_add_f32 v[{S}:{S+1}], v[{S}:{S+1}], v[{a+2}:{a+3}]')
                p(f'v_pk_fma_f32 v[{Q}:{Q+1}], v[{a}:{a+1}], v[{a}:{a+1}], v[{Q}:{Q+1}]')
                p(f'v_pk_fma_f32 v[{Q}:{Q+1}], v[{a+2}:{a+3}], v[{a+2}:{a+3}], v[{Q}:{Q+1}]')
        for u in range(2):
            A, B = acc(rt, 2*u), acc(rt, 2*u+1); o = E + 4 + 4 * u + 8 * 0
            o = E + 20 + 4 * (rt * 2 + u)
            p(f'v_cvt_pk_bf16_f32 v{o}, v{A}, v{A+1}'); p(f'v_cvt_pk_bf16_f32 v{o+1}, v{A+2}, v{A+3}')
            p(f'v_cvt_pk_bf16_f32 v{o+2}, v{B}, v{B+1}'); p(f'v_cvt_pk_bf16_f32 v{o+3}, v{B+2}, v{B+3}')
            p.vmem(f'buffer_store_dwordx4 v[{o}:{o+3}], v{V_L16}, s[{SRD_WS}:{SRD_WS+3}], s{S_T0+rt} offen offset:{u*1024}{sc}', ('st',))
        sq = E + 40 + 2 * rt
        p(f'v_add_f32 v{sq}, v{S}, v{S+1}'); p(f'v_add_f32 v{sq+1}, v{Q}, v{Q+1}')
        reduce_g(p, sq, E + 4); reduce_g(p, sq + 1, E + 5)
    p(f'v_cmp_gt_u32 vcc, 16, v{V_LANE}')
    p(f's_and_saveexec_b64 s[{S_T0+4}:{S_T0+5}], vcc')
    for rt in range(2):
        sq = E + 40 + 2 * rt
        p(f'buffer_store_dwordx2 v[{sq}:{sq+1}], v{T+1}, s[{SRD_WS}:{SRD_WS+3}], s{S_T0+2} offen offset:{rt*1024}{sc}')
    p(f's_mov_b64 exec, s[{S_T0+4}:{S_T0+5}]')

LDS_KV = 65536
def p2_a(p, sc, sc_ld):
    p2_common(p, S_WO, sc_ld)
    p(f's_mul_i32 s{S_T0}, s{S_WAVE}, 9216'); p(f's_add_u32 s{S_T0+1}, s{S_T0}, {WS_KV}'); p(f's_add_u32 s{S_T0}, s{S_T0}, {LDS_KV}')
    for n in range(9):
        p(f's_add_u32 m0, s{S_T0}, {n*1024}')
        p(f's_add_u32 s{S_T0+2}, s{S_T0+1}, {n*1024}')
        p.vmem(f'buffer_load_dwordx4 v{V_L16}, s[{SRD_WS}:{SRD_WS+3}], s{S_T0+2} offen lds{sc_ld}', ('w',))
    act_loads(p, WS_PQ, 16, list(range(16)), sc_ld)
    for r in range(V_ACC, V_ACC + 32): p(f'v_mov_b32 v{r}, 0')
    VK = E
    VZ = E + 1
    ME, MO = E + 2, E + 3
    p(f'v_lshlrev_b32 v{VK}, 2, v{V_LANE}'); p(f'v_add_u32 v{VK}, {LDS_KV}, v{VK}')
    p(f'v_and_b32 v{T}, 1, v{V_M}'); p(f'v_lshlrev_b32 v{VZ}, 6, v{T}'); p(f'v_lshl_add_u32 v{VZ}, v{V_G}, 4, v{VZ}'); p(f'v_add_u32 v{VZ}, {LDS_KV+32768}, v{VZ}')
    p(f'v_subrev_u32 v{ME}, 1, v{T}')
    p(f'v_not_b32 v{MO}, v{ME}')
    EPS = E + 4
    p(f'v_mov_b32 v{EPS}, {f2u(1e-6):#x}')
    p.need_vm(('w',)); p('s_barrier')
    RK = E + 8
    RZ = E + 16
    KA = E + 20
    ZA = E + 24
    NUM = E + 28
    DEN = E + 44
    OF = E + 52
    def xneed(ks):
        for hh in range(2):
            h = 2 * ks + hh
            p.ds(f'ds_read2st64_b32 v[{RK+4*hh}:{RK+4*hh+1}], v{VK} offset0:{4*h} offset1:{4*h+1}', ('kv', ks))
            p.ds(f'ds_read2st64_b32 v[{RK+4*hh+2}:{RK+4*hh+3}], v{VK} offset0:{4*h+2} offset1:{4*h+3}', ('kv', ks))
        p.ds(f'ds_read_b128 v[{RZ}:{RZ+3}], v{VZ} offset:{ks*128}', ('kv', ks))
        p.need_lgkm(('kv', ks))
        for hh in range(2):
            p(f'v_cvt_pk_bf16_f32 v{KA+2*hh}, v{RK+4*hh}, v{RK+4*hh+1}'); p(f'v_cvt_pk_bf16_f32 v{KA+2*hh+1}, v{RK+4*hh+2}, v{RK+4*hh+3}')
        p(f'v_cvt_pk_bf16_f32 v{RZ}, v{RZ}, v{RZ+1}'); p(f'v_cvt_pk_bf16_f32 v{RZ+1}, v{RZ+2}, v{RZ+3}')
        p(f'v_and_b32 v{ZA}, v{ME}, v{RZ}'); p(f'v_and_b32 v{ZA+1}, v{ME}, v{RZ+1}')
        p(f'v_and_b32 v{ZA+2}, v{MO}, v{RZ}'); p(f'v_and_b32 v{ZA+3}, v{MO}, v{RZ+1}')
        p.need_vm(('x', ks))
        for rt in range(2):
            a0 = (ks * 2 + rt) * 4
            for hh in range(2):
                d = NUM + (rt * 2 + hh) * 4
                p(f'v_mfma_f32_16x16x16_bf16 v[{d}:{d+3}], v[{KA+2*hh}:{KA+2*hh+1}], a[{a0+2*hh}:{a0+2*hh+1}], 0')
            d = DEN + rt * 4
            p(f'v_mfma_f32_16x16x32_bf16 v[{d}:{d+3}], v[{ZA}:{ZA+3}], a[{a0}:{a0+3}], 0')
        for rt in range(2):
            d = DEN + rt * 4
            p(f'v_add_f32 v{d}, v{EPS}, v{d}'); p(f'v_add_f32 v{d+1}, v{EPS}, v{d+1}')
            p(f'v_rcp_f32 v{d}, v{d}'); p(f'v_rcp_f32 v{d+1}, v{d+1}')
            for hh in range(2):
                n = NUM + (rt * 2 + hh) * 4
                for r in range(4): p(f'v_mul_f32 v{n+r}, v{n+r}, v{d+hh}')
                p(f'v_cvt_pk_bf16_f32 v{OF+rt*4+2*hh}, v{n}, v{n+1}'); p(f'v_cvt_pk_bf16_f32 v{OF+rt*4+2*hh+1}, v{n+2}, v{n+3}')
    gemm_core(p, 16, 4, wread64, lambda ks, rt: f'v[{OF+rt*4}:{OF+rt*4+3}]', xneed, acc, V_WF)
    p(f's_lshl_b32 s{S_T0}, s67, 14'); p(f's_and_b32 s{S_T0+1}, s{S_J}, 7'); p(f's_lshl_b32 s{S_T0+1}, s{S_T0+1}, 11'); p(f's_add_u32 s{S_T0}, s{S_T0}, s{S_T0+1}')
    p(f's_add_u32 s{S_T0}, s{S_T0}, {WS_AA}'); p(f's_add_u32 s{S_T0+1}, s{S_T0}, 16384')
    for rt in range(2):
        for u in range(2):
            A, B = acc(rt, 2*u), acc(rt, 2*u+1)
            o = E + 60 + 4 * (rt * 2 + u)
            p(f'v_cvt_pk_bf16_f32 v{o}, v{A}, v{A+1}'); p(f'v_cvt_pk_bf16_f32 v{o+1}, v{A+2}, v{A+3}')
            p(f'v_cvt_pk_bf16_f32 v{o+2}, v{B}, v{B+1}'); p(f'v_cvt_pk_bf16_f32 v{o+3}, v{B+2}, v{B+3}')
            p.vmem(f'buffer_store_dwordx4 v[{o}:{o+3}], v{V_L16}, s[{SRD_WS}:{SRD_WS+3}], s{S_T0+rt} offen offset:{u*1024}{sc}', ('st',))

def rowlocal_map(p):
    p('s_and_b32 s52, s2, 7'); p('s_lshr_b32 s53, s2, 3')
    p('s_lshl_b32 s52, s52, 1'); p('s_lshr_b32 s54, s53, 4'); p(f's_add_u32 s{S_I}, s52, s54'); p(f's_and_b32 s{S_J}, s53, 15')

def p2_kernel(sc='', sc_ld=''):
    p = Prog(); name = 'p2_kernel'
    p('s_cmp_ge_u32 s2, 256'); p('s_cbranch_scc1 L2_end')
    load_ptrs(p); wave_ids(p); rowlocal_map(p)
    p('s_waitcnt lgkmcnt(0)')
    srd(p, SRD_WS, S_WS, WS_SIZE)
    p(f's_cmp_ge_u32 s{S_J}, 8'); p('s_cbranch_scc1 L2_a')
    p2_x1(p, sc, sc_ld); p('s_endpgm')
    p('L2_a:'); p.vm = []; p.lgkm = []
    p2_a(p, sc, sc_ld); p('s_endpgm')
    p('L2_end:'); p('s_endpgm')
    return name, p
```

```python
from common import *
from core import *
from p1 import gelu_pairs, const_pair
from p2 import act_loads, rowlocal_map

V_LANE, V_M, V_G = 1, 2, 3
T = 4
V_WB = 16
V_WD = 20
V_L16 = 24 + 3
V_WF = 28
V_ACC = 52
V_ONES = 108
V_CSA = 112
E = 120

def acc(rt, t): return V_ACC + (rt * 7 + t) * 4

def w3_dma_setup(p):
    for pp in range(7):
        p(f'v_add_u32 v{T}, {64*pp}, v{V_LANE}')
        p(f'v_mul_u32_u24 v{T+1}, 4682, v{T}'); p(f'v_lshrrev_b32 v{T+1}, 16, v{T+1}')
        p(f'v_mul_u32_u24 v{T+2}, 14, v{T+1}'); p(f'v_sub_u32 v{T+2}, v{T}, v{T+2}')
        p(f'v_mul_u32_u24 v{T+1}, 3584, v{T+1}')
        p(f'v_lshl_add_u32 v{T+1}, v{T+2}, 4, v{T+1}')
        p(f'v_subrev_u32 v{V_WD+pp}, {(pp&3)*1024}, v{T+1}')

def w3_dma(p, tag):
    for gi in range(4):
        p(f's_add_u32 s{S_T0+2}, s64, {gi*32*3584}')
        for pp in range(7):
            if pp in (0, 4): p(f's_add_u32 m0, s66, {gi*7168 + (pp//4)*4096}')
            if pp in (0, 4): p('s_nop 0')
            p.vmem(f'buffer_load_dwordx4 v{V_WD+pp}, s[{SRD_W}:{SRD_W+3}], s{S_T0+2} offen offset:{(pp&3)*1024} lds', tag)

def p3_body(p, sc, sc_ld):
    import p2
    p2.V_L16 = V_L16
    srd(p, SRD_W, S_W3, 512 * 3584)
    w3_dma_setup(p)
    p(f's_mul_i32 s64, s{S_J}, 224'); p(f's_mul_i32 s{S_T0}, s{S_WAVE}, {4*32*3584}'); p(f's_add_u32 s64, s64, s{S_T0}')
    p(f's_mul_i32 s66, s{S_WAVE}, {4*7168}')
    w3_dma(p, ('w',))
    p(f'v_lshlrev_b32 v{V_L16}, 4, v{V_LANE}')
    p(f's_lshl_b32 s67, s{S_I}, 3'); p(f's_lshl_b32 s{S_T0}, s{S_WAVE}, 1'); p(f's_add_u32 s67, s67, s{S_T0}')
    ST = E
    p(f'v_lshlrev_b32 v{T}, 6, v{V_M}'); p(f'v_lshl_add_u32 v{T}, v{V_G}, 4, v{T}')
    p(f's_lshl_b32 s{S_T0}, s67, 10'); p(f's_add_u32 s{S_T0}, s{S_T0}, {WS_ST}')
    for rt in range(2):
        p.vmem(f'buffer_load_dwordx4 v[{ST+4*rt}:{ST+4*rt+3}], v{T}, s[{SRD_WS}:{SRD_WS+3}], s{S_T0} offen offset:{rt*1024}{sc_ld}', ('st',))
    act_loads(p, WS_X1, 16, list(range(16)), sc_ld)
    p(f'v_lshrrev_b32 v{T}, 2, v{V_LANE}'); p(f'v_and_b32 v{T}, 3, v{T}')
    p(f'v_lshl_add_u32 v{T}, v{V_G}, 2, v{T}'); p(f'v_mul_u32_u24 v{T}, 224, v{T}')
    p(f'v_and_b32 v{T+1}, 3, v{V_LANE}'); p(f'v_lshl_add_u32 v{V_WB}, v{T+1}, 3, v{T}')
    p(f'v_add_u32 v{V_WB+1}, {8*7168}, v{V_WB}')
    p(f's_lshl_b32 s{S_T0}, s{S_WAVE}, 5'); p(f'v_add_u32 v{V_WB+2}, s{S_T0}, v{V_WB}')
    p(f's_add_u32 s{S_T0+1}, s{S_WAVE}, 4'); p(f's_min_u32 s{S_T0+1}, s{S_T0+1}, 6'); p(f's_lshl_b32 s{S_T0+1}, s{S_T0+1}, 5')
    p(f'v_add_u32 v{V_WB+3}, s{S_T0+1}, v{V_WB}')
    for r in range(V_ACC, V_ACC + 56): p(f'v_mov_b32 v{r}, 0')
    for r in range(4): p(f'v_mov_b32 v{V_ONES+r}, 0x3f803f80')
    for r in range(8): p(f'v_mov_b32 v{V_CSA+r}, 0')
    p.need_vm(('w',)); p('s_barrier')
    ones = f'v[{V_ONES}:{V_ONES+3}]'
    cu = [(ks, x) for ks in range(16) for x in range(2)]
    def cbuf(n): return V_WF + (n % 6) * 4
    wincur = [0, 0]
    def cissue(n):
        ks, x = cu[n]
        if ks >= 8 and wincur[x] == 0:
            p(f'v_add_u32 v{V_WB+2+x}, {8*7168}, v{V_WB+2+x}'); wincur[x] = 1
        for h in range(2):
            p.ds(f'ds_read_b64_tr_b16 v[{cbuf(n)+2*h}:{cbuf(n)+2*h+1}], v{V_WB+2+x} offset:{(ks%8)*7168 + h*3584}', ('c', n))
    for n in range(5): cissue(n)
    for n, (ks, x) in enumerate(cu):
        if n + 5 < len(cu): cissue(n + 5)
        p.need_lgkm(('c', n))
        p(f'v_mfma_f32_16x16x32_bf16 v[{V_CSA+4*x}:{V_CSA+4*x+3}], v[{cbuf(n)}:{cbuf(n)+3}], {ones}, v[{V_CSA+4*x}:{V_CSA+4*x+3}]')
    CSL = 114688
    p(f'v_lshlrev_b32 v{T}, 4, v{V_G}'); p(f'v_add_u32 v{T}, {CSL}, v{T}')
    p(f's_lshl_b32 s{S_T0}, s{S_WAVE}, 6'); p(f'v_add_u32 v{T+1}, s{S_T0}, v{T}')
    p(f's_lshl_b32 s{S_T0+1}, s{S_T0+1}, 1'); p(f'v_add_u32 v{T+2}, s{S_T0+1}, v{T}')
    p(f'v_cmp_eq_u32 vcc, 0, v{V_M}')
    p(f's_and_saveexec_b64 s[{S_T0+2}:{S_T0+3}], vcc')
    p.ds(f'ds_write_b128 v{T+1}, v[{V_CSA}:{V_CSA+3}]')
    p.ds(f'ds_write_b128 v{T+2}, v[{V_CSA+4}:{V_CSA+7}]')
    p(f's_mov_b64 exec, s[{S_T0+2}:{S_T0+3}]')
    p.wait_all_lgkm()
    def wread(ks, t, h): return (V_WB + (ks // 8), (ks % 8) * 7168 + h * 3584 + t * 32)
    gemm_core(p, 16, 7, wread, lambda ks, rt: f'a[{(ks*2+rt)*4}:{(ks*2+rt)*4+3}]', lambda ks: p.need_vm(('x', ks)), acc, V_WF)
    p('s_barrier')
    CS = E + 24
    for t in range(7):
        p.ds(f'ds_read_b128 v[{CS+4*t}:{CS+4*t+3}], v{T} offset:{t*64}')
    MR = E + 8
    for rt in range(2):
        s = ST + 4 * rt
        p(f'v_add_f32 v{s}, v{s}, v{s+2}'); p(f'v_add_f32 v{s+1}, v{s+1}, v{s+3}')
        reduce_g(p, s, E + 12); reduce_g(p, s + 1, E + 13)
        p(f'v_mul_f32 v{MR+2*rt}, {f2u(-1.0/512):#x}, v{s}')
        p(f'v_mul_f32 v{E+12}, {f2u(1.0/512):#x}, v{s+1}')
        p(f'v_fma_f32 v{E+12}, -v{MR+2*rt}, v{MR+2*rt}, v{E+12}')
        p(f'v_max_f32 v{E+12}, 0, v{E+12}')
        p(f'v_add_f32 v{E+12}, {f2u(1e-5):#x}, v{E+12}')
        p(f'v_rsq_f32 v{MR+2*rt+1}, v{E+12}')
    const_pair(p, E+14, GELU_C1); const_pair(p, E+16, GELU_C0); const_pair(p, E+18, 1.0)
    p(f's_mul_i32 s{S_T0}, s67, {56*1024}'); p(f's_add_u32 s{S_T0}, s{S_T0}, {WS_H2}')
    p(f's_mul_i32 s{S_T0+1}, s{S_J}, 7')
    p.wait_all_lgkm()
    TMP = E + 56
    k = 0
    for t in range(7):
        p(f's_add_u32 s{S_T0+2}, s{S_T0+1}, {t}')
        p(f's_lshr_b32 s{S_T0+3}, s{S_T0+2}, 1'); p(f's_lshl_b32 s{S_T0+3}, s{S_T0+3}, 10')
        p(f's_and_b32 s{S_T0+2}, s{S_T0+2}, 1'); p(f's_lshl_b32 s{S_T0+2}, s{S_T0+2}, 3')
        p(f's_add_u32 s{S_T0+3}, s{S_T0+3}, s{S_T0+2}'); p(f's_add_u32 s{S_T0+3}, s{S_T0+3}, s{S_T0}')
        p(f's_add_u32 s{S_T0+4}, s{S_T0+3}, {56*1024}')
        prs = []
        for rt in range(2):
            A = acc(rt, t); mr = MR + 2 * rt
            for (r, c) in ((A, CS + 4*t), (A + 2, CS + 4*t + 2)):
                p(f'v_pk_fma_f32 v[{r}:{r+1}], v[{c}:{c+1}], v[{mr}:{mr+1}], v[{r}:{r+1}] op_sel_hi:[1,0,1]')
            for r in (A, A + 2):
                p(f'v_pk_mul_f32 v[{r}:{r+1}], v[{r}:{r+1}], v[{mr}:{mr+1}] op_sel:[0,1] op_sel_hi:[1,1]')
            prs += [A, A + 2]
        gelu_pairs(p, prs, TMP, E+14, E+16, E+18)
        for rt in range(2):
            A = acc(rt, t); o = E + 64 + 2 * (k % 4); k += 1
            p(f'v_cvt_pk_bf16_f32 v{o}, v{A}, v{A+1}'); p(f'v_cvt_pk_bf16_f32 v{o+1}, v{A+2}, v{A+3}')
            p.vmem(f'buffer_store_dwordx2 v[{o}:{o+1}], v{V_L16}, s[{SRD_WS}:{SRD_WS+3}], s{S_T0+3+rt} offen{sc}', ('st',))

def p3_kernel(sc='', sc_ld=''):
    p = Prog(); name = 'p3_kernel'
    p('s_cmp_ge_u32 s2, 256'); p('s_cbranch_scc1 L3_end')
    load_ptrs(p); wave_ids(p); rowlocal_map(p)
    p('s_waitcnt lgkmcnt(0)')
    srd(p, SRD_WS, S_WS, WS_SIZE)
    p3_body(p, sc, sc_ld); p('s_endpgm')
    p('L3_end:'); p('s_endpgm')
    return name, p
```

```python
from common import *
from core import *
from p2 import act_loads
import p2

V_LANE, V_M, V_G = 1, 2, 3
T = 4
V_WB = 16
V_WD = 20
V_L16 = 24
V_WF = 28
V_ACC = 52
V_X1 = 84
V_AA = 92
V_GT = 100
E = 104
NRES = 20
HALF = NRES * 4096

def acc(rt, t): return V_ACC + (rt * 4 + t) * 4

def p4_body(p, sc_ld):
    p2.V_L16 = V_L16
    srd(p, SRD_W, S_W4, 1792 * 1024)
    w64_dma_setup(p, V_WD, T, V_LANE, 1024)
    p(f's_and_b32 s70, s{S_WAVE}, 1'); p(f's_lshr_b32 s71, s{S_WAVE}, 1')
    p(f's_mul_i32 s64, s71, {28*32*1024}'); p(f's_lshl_b32 s{S_T0}, s{S_J}, 7'); p(f's_add_u32 s64, s64, s{S_T0}')
    p(f's_mul_i32 s72, s70, {10*32*1024}'); p(f's_add_u32 s72, s72, s64')
    p(f's_mul_i32 s66, s71, {HALF}')
    p(f's_mul_i32 s73, s70, {10*4096}'); p(f's_add_u32 s73, s73, s66')
    w64_dma(p, V_WD, SRD_W, 72, 73, 0, 0, 320, 1024, S_T0 + 2, ('w',))
    p(f'v_lshlrev_b32 v{V_L16}, 4, v{V_LANE}')
    p(f's_lshl_b32 s67, s{S_I}, 2'); p(f's_lshl_b32 s{S_T0}, s70, 1'); p(f's_add_u32 s67, s67, s{S_T0}')
    p(f's_lshl_b32 s{S_T0}, s67, 14'); p(f's_lshl_b32 s{S_T0+1}, s{S_J}, 1'); p(f's_add_u32 s{S_T0+1}, s{S_T0+1}, s71'); p(f's_lshl_b32 s{S_T0+1}, s{S_T0+1}, 10')
    p(f's_add_u32 s{S_T0}, s{S_T0}, s{S_T0+1}')
    for rt in range(2):
        p(f's_add_u32 s{S_T0+2}, s{S_T0}, {WS_X1 + rt*16384}')
        p.vmem(f'buffer_load_dwordx4 v[{V_X1+4*rt}:{V_X1+4*rt+3}], v{V_L16}, s[{SRD_WS}:{SRD_WS+3}], s{S_T0+2} offen{sc_ld}', ('e',))
        p(f's_add_u32 s{S_T0+3}, s{S_T0}, {WS_AA + rt*16384}')
        p.vmem(f'buffer_load_dwordx4 v[{V_AA+4*rt}:{V_AA+4*rt+3}], v{V_L16}, s[{SRD_WS}:{SRD_WS+3}], s{S_T0+3} offen{sc_ld}', ('e',))
    p(f's_lshl_b32 s{S_T0}, s67, 6'); p(f's_add_u32 s{S_T0}, s{S_T0}, {WS_G}')
    p(f'v_lshlrev_b32 v{T}, 2, v{V_M}')
    for rt in range(2):
        p.vmem(f'buffer_load_dword v{V_GT+rt}, v{T}, s[{SRD_WS}:{SRD_WS+3}], s{S_T0} offen offset:{rt*64}{sc_ld}', ('e',))
    p(f's_mul_i32 s74, s71, {28*1024}')
    p.need_vm(('w',))
    act_loads(p, WS_H2, 56, list(range(28)), sc_ld, s_ks0=74)
    w64_read_setup(p, V_WB, T, V_LANE, V_G, extra_s=66)
    for r in range(V_ACC, V_ACC + 32): p(f'v_mov_b32 v{r}, 0')
    p('s_barrier')
    cur = [0]
    def wread(ks, t, h):
        slot = ks if ks < NRES else ks - NRES
        a = slot * 4096 + h * 2048
        w = a // 65536
        if w != cur[0] and t == 0 and h == 0:
            d = (w - cur[0]) * 65536
            for r in range(V_WB, V_WB + 4):
                p(f'v_add_u32 v{r}, {d}, v{r}') if d > 0 else p(f'v_subrev_u32 v{r}, {-d}, v{r}')
            cur[0] = w
        return (V_WB + t, a - cur[0] * 65536)
    def refill():
        p('s_barrier')
        p(f's_mul_i32 s72, s70, {4*32*1024}'); p(f's_add_u32 s72, s72, s64')
        p(f's_lshl_b32 s73, s70, 14'); p(f's_add_u32 s73, s73, s66')
        w64_dma(p, V_WD, SRD_W, 72, 73, 0, 20*32, 128, 1024, S_T0 + 2, ('w2',))
    def wait2():
        p.need_vm(('w2',)); p('s_barrier')
    hooks = {32: refill, 20*4 - 6: wait2}
    gemm_core(p, 28, 4, wread, lambda ks, rt: f'a[{(ks*2+rt)*4}:{(ks*2+rt)*4+3}]', lambda ks: p.need_vm(('x', ks)), acc, V_WF, hooks=hooks)
    p('s_barrier')
    p(f's_lshl_b32 s{S_T0}, s{S_WAVE}, 12'); p(f'v_add_u32 v{T}, s{S_T0}, v{V_L16}')
    p(f's_xor_b32 s{S_T0+1}, s{S_WAVE}, 2'); p(f's_lshl_b32 s{S_T0+1}, s{S_T0+1}, 12'); p(f'v_add_u32 v{T+1}, s{S_T0+1}, v{V_L16}')
    lk1 = p.label('L_kh1'); ld = p.label('L_khd')
    p(f's_cmp_eq_u32 s71, 1'); p(f's_cbranch_scc1 {lk1}')
    for rt in range(2):
        for x in range(2):
            p(f'ds_write_b128 v{T}, v[{acc(rt,2+x)}:{acc(rt,2+x)+3}] offset:{(rt*2+x)*1024}')
    p(f's_branch {ld}')
    p(f'{lk1}:')
    for rt in range(2):
        for x in range(2):
            p(f'ds_write_b128 v{T}, v[{acc(rt,x)}:{acc(rt,x)+3}] offset:{(rt*2+x)*1024}')
    p('s_nop 1')
    for rt in range(2):
        for x in range(2):
            for r in range(4): p(f'v_mov_b32 v{acc(rt,x)+r}, v{acc(rt,2+x)+r}')
    p(f'{ld}:')
    p('s_waitcnt lgkmcnt(0)'); p('s_barrier')
    for rt in range(2):
        for x in range(2):
            r = E + (rt * 2 + x) * 4
            p(f'ds_read_b128 v[{r}:{r+3}], v{T+1} offset:{(rt*2+x)*1024}')
    p('s_waitcnt lgkmcnt(0)')
    p.need_vm(('e',))
    srd(p, SRD_M, S_OUT, 2048 * 1024)
    p(f'v_and_b32 v{T+2}, 1, v{V_G}'); p(f'v_lshlrev_b32 v{T+2}, 5, v{T+2}')
    p(f'v_lshrrev_b32 v{T+3}, 1, v{V_G}'); p(f'v_lshl_add_u32 v{T+2}, v{T+3}, 4, v{T+2}')
    p(f'v_lshl_add_u32 v{T+2}, v{V_M}, 10, v{T+2}')
    p(f's_lshl_b32 s{S_T0}, s67, 14'); p(f's_lshl_b32 s{S_T0+1}, s{S_J}, 7'); p(f's_add_u32 s{S_T0}, s{S_T0}, s{S_T0+1}')
    p(f's_lshl_b32 s{S_T0+1}, s71, 6'); p(f's_add_u32 s{S_T0}, s{S_T0}, s{S_T0+1}')
    for rt in range(2):
        gt = V_GT + rt; og = E + 16
        p(f'v_sub_f32 v{og}, 1.0, v{gt}')
        for x in range(2):
            a = acc(rt, x); r = E + (rt * 2 + x) * 4
            for q in range(4): p(f'v_add_f32 v{a+q}, v{a+q}, v{r+q}')
            x1 = V_X1 + 4 * rt + 2 * x; aa = V_AA + 4 * rt + 2 * x
            U = E + 20
            p(f'v_lshlrev_b32 v{U}, 16, v{x1}'); p(f'v_and_b32 v{U+1}, 0xffff0000, v{x1}')
            p(f'v_lshlrev_b32 v{U+2}, 16, v{x1+1}'); p(f'v_and_b32 v{U+3}, 0xffff0000, v{x1+1}')
            p(f'v_lshlrev_b32 v{U+4}, 16, v{aa}'); p(f'v_and_b32 v{U+5}, 0xffff0000, v{aa}')
            p(f'v_lshlrev_b32 v{U+6}, 16, v{aa+1}'); p(f'v_and_b32 v{U+7}, 0xffff0000, v{aa+1}')
            for q in range(4):
                p(f'v_add_f32 v{a+q}, v{a+q}, v{U+q}')
                p(f'v_mul_f32 v{a+q}, v{a+q}, v{og}')
                p(f'v_fma_f32 v{a+q}, v{U+4+q}, v{gt}, v{a+q}')
            o = E + 32 + rt * 4 + 2 * x
            p(f'v_cvt_pk_bf16_f32 v{o}, v{a}, v{a+1}'); p(f'v_cvt_pk_bf16_f32 v{o+1}, v{a+2}, v{a+3}')
        o = E + 32 + rt * 4
        p(f'v_permlane16_swap_b32 v{o}, v{o+2}'); p(f'v_permlane16_swap_b32 v{o+1}, v{o+3}')
        p(f's_add_u32 s{S_T0+2}, s{S_T0}, {rt*16384}')
        p(f'buffer_store_dwordx4 v[{o}:{o+3}], v{T+2}, s[{SRD_M}:{SRD_M+3}], s{S_T0+2} offen')

def p4_map(p):
    p('s_and_b32 s52, s2, 7'); p('s_lshr_b32 s53, s2, 3')
    p('s_lshl_b32 s52, s52, 2'); p('s_lshr_b32 s54, s53, 3'); p(f's_add_u32 s{S_I}, s52, s54'); p(f's_and_b32 s{S_J}, s53, 7')

def p4_kernel(sc_ld=''):
    p = Prog(); name = 'p4_kernel'
    p('s_cmp_ge_u32 s2, 256'); p('s_cbranch_scc1 L4_end')
    load_ptrs(p); wave_ids(p); p4_map(p)
    p('s_waitcnt lgkmcnt(0)')
    srd(p, SRD_WS, S_WS, WS_SIZE)
    p4_body(p, sc_ld); p('s_endpgm')
    p('L4_end:'); p('s_endpgm')
    return name, p
```

```python
import re

HDR = '.amdgcn_target "amdgcn-amd-amdhsa--gfx950"\n.text\n'

_reg_re = re.compile(r'^(-?)(?:abs\()?([vas])(?:(\d+)|\[(\d+):(\d+)\])\)?$')

def parse_reg(tok):
    tok = tok.strip()
    if tok in ('vcc',): return [('s', 'vcc_lo'), ('s', 'vcc_hi')]
    if tok in ('vcc_lo', 'vcc_hi', 'm0', 'exec_lo', 'exec_hi', 'scc'): return [('s', tok)]
    if tok == 'exec': return [('s', 'exec_lo'), ('s', 'exec_hi')]
    m = _reg_re.match(tok)
    if not m: return None
    c = m.group(2)
    if m.group(3) is not None: return [(c, int(m.group(3)))]
    return [(c, i) for i in range(int(m.group(4)), int(m.group(5)) + 1)]

TRANS = ('v_exp_f32', 'v_log_f32', 'v_rcp_f32', 'v_rsq_f32', 'v_sqrt_f32', 'v_sin_f32', 'v_cos_f32')

def split_ops(s):
    out, depth, cur = [], 0, ''
    for ch in s:
        if ch == '[': depth += 1
        if ch == ']': depth -= 1
        if ch == ',' and depth == 0:
            out.append(cur.strip()); cur = ''
        else: cur += ch
    if cur.strip(): out.append(cur.strip())
    return out

class Ins:
    __slots__ = ('text', 'mn', 'reads', 'writes', 'kind', 'states', 'wide_store', 'lds_dma', 'passes', 'srcC', 'srcAB')
    def __init__(self, text):
        self.text = text
        t = text.split(';')[0].strip()
        parts = t.split(None, 1)
        self.mn = mn = parts[0]
        rest = parts[1] if len(parts) > 1 else ''
        ops = split_ops(rest)
        mods = ''
        if ops:
            last = ops[-1].split()
            ops[-1] = last[0]; mods = ' '.join(last[1:])
        regs = [parse_reg(o) or [] for o in ops]
        self.reads, self.writes = set(), set()
        self.states = 1; self.wide_store = False; self.lds_dma = False
        self.passes = 0; self.srcC = set(); self.srcAB = set()
        if mn == 's_nop':
            self.kind = 'nop'; self.states = int(ops[0], 0) + 1
        elif mn.startswith('v_mfma') or mn.startswith('v_smfma'):
            self.kind = 'mfma'
            self.writes = set(regs[0]); self.srcAB = set(regs[1]) | set(regs[2]); self.srcC = set(regs[3])
            self.reads = self.srcAB | self.srcC
            self.passes = 8 if '32x32' in mn else 4
        elif mn.startswith('v_'):
            self.kind = 'trans' if mn.replace('_e32', '').replace('_e64', '') in TRANS else 'valu'
            if mn.startswith('v_cmp'):
                self.writes = set(regs[0]);
                for r in regs[1:]: self.reads |= set(r)
                if mn.startswith('v_cmpx'): self.writes |= {('s', 'exec_lo'), ('s', 'exec_hi')}
            elif 'permlane' in mn and 'swap' in mn:
                self.writes = set(regs[0]) | set(regs[1]); self.reads = set(self.writes); self.kind = 'permlane'
            elif mn.startswith('v_readfirstlane') or mn.startswith('v_readlane'):
                self.writes = set(regs[0]); self.kind = 'readlane'
                for r in regs[1:]: self.reads |= set(r)
            elif mn.startswith('v_add_co') or mn.startswith('v_sub_co') or mn.startswith('v_addc_co') or mn.startswith('v_subb_co'):
                self.writes = set(regs[0]) | set(regs[1])
                for r in regs[2:]: self.reads |= set(r)
            else:
                self.writes = set(regs[0])
                for r in regs[1:]: self.reads |= set(r)
                if mn.startswith('v_fmac') or mn.startswith('v_dot2c') or mn.startswith('v_pk_fmac') or mn.startswith('v_mac'):
                    self.reads |= set(regs[0])
                if mn.startswith('v_cndmask') and len(ops) == 3: self.reads |= {('s', 'vcc_lo'), ('s', 'vcc_hi')}
                if 'dpp' in mods or 'row_' in mods or 'quad_perm' in mods: self.kind = 'dpp'; self.reads |= set(regs[0])
        elif mn.startswith('ds_'):
            self.kind = 'ds'
            if mn.startswith('ds_read') or mn.startswith('ds_bpermute') or mn.startswith('ds_permute') or mn.startswith('ds_swizzle'):
                self.writes = set(regs[0])
                for r in regs[1:]: self.reads |= set(r)
            else:
                for r in regs: self.reads |= set(r)
        elif mn.startswith('buffer_') or mn.startswith('global_') or mn.startswith('flat_'):
            self.kind = 'vmem'
            allmods = (mods + ' ' + ' '.join(o for o in ops if parse_reg(o) is None)).split()
            is_lds = 'lds' in allmods or '_lds_' in mn
            if mn in ('buffer_wbl2', 'buffer_inv'):
                pass
            elif 'load' in mn and not is_lds:
                self.writes = set(regs[0])
                for r in regs[1:]: self.reads |= set(r)
            elif 'atomic' in mn and 'sc0' in allmods:
                self.writes = set(regs[0])
                for r in regs: self.reads |= set(r)
            else:
                for r in regs: self.reads |= set(r)
                if is_lds: self.lds_dma = True; self.reads.add(('s', 'm0'))
                if 'store' in mn and ('x3' in mn or 'x4' in mn):
                    self.wide_store = True
                    self.srcAB = set(regs[0]) if mn.startswith('buffer_') else set(regs[1])
        elif mn.startswith('s_'):
            self.kind = 'salu'
            if mn.startswith('s_cmp') or mn.startswith('s_cbranch') or mn in ('s_branch', 's_barrier', 's_waitcnt', 's_endpgm', 's_sleep', 's_setprio', 's_bitcmp1_b32', 's_bitcmp0_b32'):
                for r in regs: self.reads |= set(r)
            elif mn.startswith('s_load') or mn.startswith('s_memtime') or mn.startswith('s_memrealtime') or mn.startswith('s_getpc') or mn.startswith('s_getreg'):
                self.writes = set(regs[0])
                for r in regs[1:]: self.reads |= set(r)
            else:
                if regs: self.writes = set(regs[0])
                for r in regs[1:]: self.reads |= set(r)
                if 'saveexec' in mn: self.writes |= {('s', 'exec_lo'), ('s', 'exec_hi')}
        else:
            self.kind = 'other'

def is_valu(i): return i.kind in ('valu', 'trans', 'permlane', 'readlane', 'dpp')

def required(prev, cur):
    need = 0
    pv = is_valu(prev)
    vw = {r for r in prev.writes if r[0] in 'va'}
    sw = {r for r in prev.writes if r[0] == 's'}
    if prev.kind == 'mfma':
        D = prev.writes
        if cur.kind == 'mfma':
            if cur.srcAB & D: need = max(need, 8 if prev.passes == 4 else 12)
            if cur.srcC & D:
                if not (cur.srcC == D and cur.passes == prev.passes): need = max(need, 6 if prev.passes == 4 else 10)
            if (cur.writes & D) and not (cur.srcC == D): need = max(need, 8 if prev.passes == 4 else 12)
        elif is_valu(cur) or cur.kind in ('ds', 'vmem'):
            if (cur.reads | cur.writes) & D: need = max(need, 8 if prev.passes == 4 else 12)
        if is_valu(cur) and (cur.writes & prev.srcC): need = max(need, 3 if prev.passes == 4 else 7)
    if pv:
        if cur.kind == 'mfma' and (cur.reads & vw): need = max(need, 2)
        if cur.kind == 'mfma' and (sw & {('s', 'exec_lo'), ('s', 'exec_hi')}): need = max(need, 4)
        if prev.kind == 'trans' and is_valu(cur) and cur.kind != 'trans' and (cur.reads & vw): need = max(need, 1)
        if prev.kind == 'trans' and cur.kind == 'trans' and (cur.reads & vw): need = max(need, 1)
        if cur.kind == 'permlane' and (cur.reads & vw): need = max(need, 2)
        if cur.kind == 'dpp' and (cur.reads & vw): need = max(need, 2)
        if cur.kind == 'readlane' and (cur.reads & vw): need = max(need, 1)
        if is_valu(cur) and (cur.reads & sw): need = max(need, 2)
        if cur.kind == 'readlane' and (cur.reads & sw): need = max(need, 4)
        if cur.kind == 'vmem' and (cur.reads & sw): need = max(need, 5)
        if cur.kind == 'salu' and (cur.reads & sw): need = max(need, 4)
        if cur.kind == 'ds' and (cur.reads & sw): need = max(need, 5)
    if prev.kind == 'vmem' and prev.wide_store:
        if is_valu(cur) and (cur.writes & prev.srcAB): need = max(need, 2)
        elif (cur.writes & prev.srcAB): need = max(need, 1)
    if prev.kind == 'salu' and ('s', 'm0') in prev.writes and (cur.lds_dma): need = max(need, 1)
    if prev.kind == 'salu' and (prev.writes & {('s', 'exec_lo'), ('s', 'exec_hi')}) and cur.kind == 'dpp': need = max(need, 5)
    return need

class Prog:
    def __init__(self):
        self.items = []
        self.nlab = 0
        self.lgkm = []
        self.vm = []
    def __call__(self, s):
        for l in s.strip('\n').split('\n'):
            l = l.strip()
            if not l: continue
            if l.endswith(':') or l.startswith('.') or l.startswith(';'):
                self.items.append(l)
            else:
                self.items.append(Ins(l))
    def label(self, base='L'):
        self.nlab += 1
        return f'{base}_{self.nlab}'
    def ds(self, text, tag=None):
        self(text); self.lgkm.append(tag)
    def vmem(self, text, tag=None):
        self(text); self.vm.append(tag)
    def need_lgkm(self, tag):
        if tag not in self.lgkm: return
        idx = len(self.lgkm) - 1 - self.lgkm[::-1].index(tag)
        n = len(self.lgkm) - 1 - idx
        assert n <= 15, f'lgkmcnt {n} > 15'
        self(f's_waitcnt lgkmcnt({n})')
        self.lgkm = self.lgkm[idx + 1:]
    def need_vm(self, tag):
        if tag not in self.vm: return
        idx = len(self.vm) - 1 - self.vm[::-1].index(tag)
        n = len(self.vm) - 1 - idx
        assert n <= 63, f'vmcnt {n} > 63'
        self(f's_waitcnt vmcnt({n})')
        self.vm = self.vm[idx + 1:]
    def wait_all_lgkm(self):
        self('s_waitcnt lgkmcnt(0)'); self.lgkm = []
    def wait_all_vm(self):
        self('s_waitcnt vmcnt(0)'); self.vm = []
    def wait_all(self):
        self('s_waitcnt vmcnt(0) lgkmcnt(0)'); self.vm = []; self.lgkm = []
    def text(self, window=24):
        out = []
        hist = []
        npad = 0
        for it in self.items:
            if isinstance(it, str):
                out.append(it)
                continue
            need = 0
            dist = 0
            for p in reversed(hist):
                r = required(p, it)
                if r > dist: need = max(need, r - dist)
                dist += p.states
                if dist > window: break
            while need > 0:
                k = min(need, 16)
                nop = Ins(f's_nop {k-1}')
                out.append('    ' + nop.text); hist.append(nop); need -= k; npad += 1
            out.append('    ' + it.text)
            hist.append(it)
            if len(hist) > 64: hist = hist[-64:]
        self.npad = npad
        return '\n'.join(out) + '\n'

def kernel_begin(name):
    return f".globl {name}\n.p2align 8\n.type {name},@function\n{name}:\n"

def desc(name, vgpr=256, sgpr=96, accum=None):
    if accum is None:
        accum = min(256, (vgpr + 3) // 4 * 4)
    return f""".amdhsa_kernel {name}
  .amdhsa_next_free_vgpr {vgpr}
  .amdhsa_next_free_sgpr {sgpr}
  .amdhsa_accum_offset {accum}
  .amdhsa_group_segment_fixed_size 0
  .amdhsa_kernarg_size 96
  .amdhsa_user_sgpr_count 2
  .amdhsa_user_sgpr_kernarg_segment_ptr 1
  .amdhsa_system_sgpr_workgroup_id_x 1
  .amdhsa_float_denorm_mode_32 3
  .amdhsa_float_denorm_mode_16_64 3
.end_amdhsa_kernel
"""
```

```python
import sys
sys.path.insert(0, 'gen')
from common import *
import importlib

HEADER = open('gated_mix__linear_attn_block__mixer_s_mlp__prompt.s.ref').read().split('; Override')[0]

def assemble(kernels, out):
    s = HEADER
    for (name, p, grid, block, lds, vg, sg, ac) in kernels:
        s += f'; @launch kernel={name} grid=({grid},1,1) block=({block},1,1) lds={lds}\n'
    s += HDR
    seen = set()
    for (name, p, grid, block, lds, vg, sg, ac) in kernels:
        if name in seen: continue
        seen.add(name)
        s += kernel_begin(name) + p.text()
    s += '.section .rodata,"a"\n.p2align 6\n'
    seen = set()
    for (name, p, grid, block, lds, vg, sg, ac) in kernels:
        if name in seen: continue
        seen.add(name)
        s += '.p2align 6\n' + desc(name, vg, sg, ac)
    open(out, 'w').write(s)
    return s

if __name__ == '__main__':
    import p1, p2, p3, p4
    ks = []
    n, p = p1.p1_kernel()
    ks.append((n, p, 256, 256, 163840, 256 + 64, 96, 256))
    n, p = p2.p2_kernel()
    ks.append((n, p, 256, 256, 163840, 256 + 128, 96, 256))
    n, p = p3.p3_kernel()
    ks.append((n, p, 256, 256, 163840, 256 + 128, 96, 256))
    n, p = p4.p4_kernel()
    ks.append((n, p, 256, 256, 163840, 256 + 224, 96, 256))
    assemble(ks, sys.argv[1] if len(sys.argv) > 1 else 'out.s')
```

```python
import sys
sys.path.insert(0, 'gen')
from build import *
import p1, p2, p3, p4
def base():
    ks = []
    n, p = p1.p1_kernel(); ks.append((n, p, 256, 256, 163840, 256 + 64, 96, 256))
    n, p = p2.p2_kernel(); ks.append((n, p, 256, 256, 163840, 256 + 128, 96, 256))
    n, p = p3.p3_kernel(); ks.append((n, p, 256, 256, 163840, 256 + 128, 96, 256))
    n, p = p4.p4_kernel(); ks.append((n, p, 256, 256, 163840, 256 + 224, 96, 256))
    return ks
e = Prog(); e('s_nop 0'); e('s_endpgm')
E = ('e_kernel', e, 256, 256, 0, 32, 32, 32)
assemble(base(), 'v0.s')
assemble(base() + [E]*4, 'v1.s')
assemble([E]*4 + base(), 'v2.s')
assemble(base() + [E]*8, 'v3.s')
b = base()
assemble(b + b, 'v4.s')
assemble(b + b + b, 'v5.s')
```
